```python
import torch

def _softmax(x, axis=-1):
    return torch.softmax(x, dim=axis)
def _gelu(x):
    return torch.nn.functional.gelu(x, approximate="tanh")
def _silu(x):
    return torch.nn.functional.silu(x)
def _sigmoid(x):
    return torch.sigmoid(x)
def _layernorm(x, axis=-1, eps=1e-5):
    m = x.mean(dim=axis, keepdim=True)
    v = x.var(dim=axis, keepdim=True, unbiased=False)
    return (x - m) / torch.sqrt(v + eps)
def _scatter_add(tgt, idx, src, axis=0):
    return tgt.clone().index_add_(axis, idx, src)
def _segment_sum(src, seg, n):
    out = torch.zeros((n,) + src.shape[1:], dtype=src.dtype)
    return out.index_add_(0, seg, src)
def _pad(x, pw):
    flat = tuple(v for pair in reversed(pw) for v in pair)
    return torch.nn.functional.pad(x, flat)

kernel_name = 'sequential_preLN__grouped_kv_mqa__dense_activation_gelu__prompt'

def setup_inputs():

    _w = (lambda a: (lambda t: t.to(torch.bfloat16) if t.is_floating_point() else t)(torch.as_tensor(a)))
    def _A_setup():
        B, S, D, H = 1, 2048, 448, 16
        Dh = D // H
        return {
            "x": _w((lambda *s: torch.randn(*s, dtype=torch.bfloat16) * 0.05)(B, S, D)),
            "wq": _w((lambda *s: torch.randn(*s, dtype=torch.bfloat16) * 0.05)(D, H * Dh)),
            "wk": _w((lambda *s: torch.randn(*s, dtype=torch.bfloat16) * 0.05)(D, Dh)),
            "wv": _w((lambda *s: torch.randn(*s, dtype=torch.bfloat16) * 0.05)(D, Dh)),
            "wo": _w((lambda *s: torch.randn(*s, dtype=torch.bfloat16) * 0.05)(H * Dh, D)),
        }
    _A_in = _A_setup()

    def _B_setup():
        B, S, D, F = 1, 2048, 448, 1792
        return {
            "x": _w((lambda *s: torch.randn(*s, dtype=torch.bfloat16) * 0.05)(B, S, D)),
            "w1": _w((lambda *s: torch.randn(*s, dtype=torch.bfloat16) * 0.8)(D, F) * (D ** -0.5)),
            "b1": _w((lambda *s: torch.randn(*s, dtype=torch.bfloat16) * 12.8)(F) * 0.01),
            "w2": _w((lambda *s: torch.randn(*s, dtype=torch.bfloat16) * 0.4)(F, D) * (F ** -0.5)),
            "b2": _w((lambda *s: torch.randn(*s, dtype=torch.bfloat16) * 6.4)(D) * 0.01),
        }
    _B_in = _B_setup()

    return {
        "A_x": _A_in["x"],
        "A_wq": _A_in["wq"],
        "A_wk": _A_in["wk"],
        "A_wv": _A_in["wv"],
        "A_wo": _A_in["wo"],
        "B_x": _B_in["x"],
        "B_w1": _B_in["w1"],
        "B_b1": _B_in["b1"],
        "B_w2": _B_in["w2"],
        "B_b2": _B_in["b2"],
    }

def reference(A_x, A_wq, A_wk, A_wv, A_wo, B_x, B_w1, B_b1, B_w2, B_b2):
    def _A_ref(x, wq, wk, wv, wo):
        B, S, D = x.shape
        H = 16
        Dh = D // H
        q = (lambda x, *d: x.permute(*d))((x @ wq).reshape(B, S, H, Dh), 0, 2, 1, 3)
        k = x @ wk
        v = x @ wv
        scores = torch.einsum("bhqd,bkd->bhqk", q, k) * (Dh ** -0.5)
        p = _softmax(scores, axis=-1)
        o = torch.einsum("bhqk,bkd->bhqd", p, v)
        return (lambda x, *d: x.permute(*d))(o, 0, 2, 1, 3).reshape(B, S, H * Dh) @ wo

    def _B_ref(x, w1, b1, w2, b2):
        h = torch.einsum("bsd,df->bsf", x, w1) + b1
        h = _gelu(h)
        return torch.einsum("bsf,fd->bsd", h, w2) + b2

    x = A_x
    h = x + _A_ref(_layernorm(x, axis=-1), A_wq, A_wk, A_wv, A_wo)
    h2 = h + _B_ref(_layernorm(h, axis=-1), B_w1, B_b1, B_w2, B_b2)
    return h2
```

```python
import random
def kern(name, body, reps):
    s = f"""
.text
.globl {name}
.p2align 8
.type {name},@function
{name}:
    s_load_dwordx4 s[4:7], s[0:1], 0
    v_lshlrev_b32 v1, 4, v0
    s_waitcnt lgkmcnt(0)
    s_mov_b32 s12, s4
    s_mov_b32 s13, s5
    s_mov_b32 s14, 0x100000
    s_mov_b32 s15, 0x20000
    s_mov_b32 s16, s6
    s_mov_b32 s17, s7
    s_mov_b32 s18, 0x1000000
    s_mov_b32 s19, 0x20000
"""
    for i in range(20):
        s += f"    buffer_load_dwordx4 v[{48+4*i}:{51+4*i}], v1, s[16:19], 0 offen\n    v_add_u32 v1, 4096, v1\n"
    s += "".join(f"    v_mov_b32 v{i}, 0\n" for i in list(range(16,48)) + list(range(128, 192)))
    s += f"""
    s_waitcnt vmcnt(0)
    s_barrier
    s_mov_b32 s10, {reps}
    s_memtime s[20:21]
    s_memrealtime s[22:23]
    s_waitcnt lgkmcnt(0)
L_{name}:
{body}
    s_sub_u32 s10, s10, 1
    s_cmp_lg_u32 s10, 0
    s_cbranch_scc1 L_{name}
    s_nop 15
    s_memtime s[24:25]
    s_memrealtime s[26:27]
    s_waitcnt lgkmcnt(0)
    s_sub_u32 s24, s24, s20
    s_sub_u32 s26, s26, s22
    v_lshrrev_b32 v2, 6, v0
    s_lshl_b32 s3, s2, 2
    v_add_u32 v2, s3, v2
    v_lshlrev_b32 v2, 3, v2
    v_mov_b32 v4, s24
    v_mov_b32 v5, s26
    buffer_store_dwordx2 v[4:5], v2, s[12:15], 0 offen
    s_endpgm
.section .rodata,"a"
.p2align 6
.amdhsa_kernel {name}
  .amdhsa_next_free_vgpr 512
  .amdhsa_next_free_sgpr 102
  .amdhsa_accum_offset 256
  .amdhsa_group_segment_fixed_size 0
  .amdhsa_kernarg_size 16
  .amdhsa_user_sgpr_count 2
  .amdhsa_user_sgpr_kernarg_segment_ptr 1
  .amdhsa_system_sgpr_workgroup_id_x 1
.end_amdhsa_kernel
"""
    return s
S = [16, 32]; Q = 48; KV = [80, 96, 112]; O = 128
def a32(nsteps, do_exp=True, do_cvt=True, do_qk=True, do_pv=True, perm=False):
    L = []
    def qk(n, c):
        if do_qk:
            t, i = n//4, n%4; b = S[n%2]
            L.append(f"v_mfma_f32_32x32x16_bf16 v[{b}:{b+15}], v[{KV[t%3]+4*c}:{KV[t%3]+4*c+3}], v[{Q+8*i+4*c}:{Q+8*i+4*c+3}], " + ("0" if c == 0 else f"v[{b}:{b+15}]"))
    def pv(n, c):
        if do_pv:
            t, i = n//4, n%4; b = S[n%2]; o = O + 16*i
            L.append(f"v_mfma_f32_32x32x16_bf16 v[{o}:{o+15}], v[{KV[t%3]+8+4*c}:{KV[t%3]+8+4*c+3}], v[{b+4*c}:{b+4*c+3}], v[{o}:{o+15}]")
    def ex(n, k):
        if do_exp: L.append(f"v_exp_f32 v{S[n%2]+k}, v{S[n%2]+k}")
    def cv(n, k):
        b = S[n%2]
        if do_cvt: L.append(f"v_cvt_pk_bf16_f32 v{b+k}, v{b+2*k}, v{b+2*k+1}" if not perm else f"v_perm_b32 v{b+k}, v{b+2*k+1}, v{b+2*k}, s28")
    for n in range(nsteps):
        ex(n,0); cv(n-1,7); ex(n,1); ex(n,2); pv(n-1,1); cv(n,0); ex(n,3); ex(n,4); cv(n,1); qk(n+1,0); ex(n,5); ex(n,6); cv(n,2); ex(n,7); qk(n+1,1)
        ex(n,8); cv(n,3); ex(n,9); ex(n,10); cv(n,4); ex(n,11); ex(n,12); cv(n,5); pv(n,0); ex(n,13); ex(n,14); cv(n,6); ex(n,15)
    return "".join("    " + x + "\n" for x in L)
def a16(nsteps):
    L = []
    for n in range(nsteps):
        t, i = n//4, n%4; b = S[n%2]; nb = S[(n+1)%2]; t1, i1 = (n+1)//4, (n+1)%4
        qks = [f"v_mfma_f32_16x16x32_bf16 v[{nb+4*(2*qh+kh)}:{nb+4*(2*qh+kh)+3}], v[{KV[t1%3]+4*kh}:{KV[t1%3]+4*kh+3}], v[{Q+8*i1+4*qh}:{Q+8*i1+4*qh+3}], 0" for qh in range(2) for kh in range(2)]
        def pv(m, qh, dh):
            tt, ii = m//4, m%4; bb = S[m%2]; o = O + 16*ii + 8*qh + 4*dh
            return f"v_mfma_f32_16x16x32_bf16 v[{o}:{o+3}], v[{KV[tt%3]+8+4*dh}:{KV[tt%3]+8+4*dh+3}], v[{bb+4*qh}:{bb+4*qh+3}], v[{o}:{o+3}]"
        ex = lambda k: f"v_exp_f32 v{b+k}, v{b+k}"
        cv = lambda k: f"v_cvt_pk_bf16_f32 v{b+k}, v{b+2*k}, v{b+2*k+1}"
        pb = S[(n-1)%2]
        L += [ex(0), f"v_cvt_pk_bf16_f32 v{pb+7}, v{pb+14}, v{pb+15}", ex(1), ex(2), pv(n-1,1,0), cv(0), ex(3), ex(4), pv(n-1,1,1), cv(1), ex(5), qks[0], ex(6), cv(2), ex(7), qks[1], ex(8), cv(3), qks[2], ex(9), ex(10), qks[3], cv(4), ex(11), ex(12), pv(n,0,0), cv(5), ex(13), ex(14), pv(n,0,1), cv(6), ex(15)]
    return "".join("    " + x + "\n" for x in L)
B = {"a32": a32(12), "a16": a16(12), "a32_noexp": a32(12, do_exp=False), "a32_nomfma": a32(12, do_qk=False, do_pv=False), "a32_noqk": a32(12, do_qk=False), "a32_nopv": a32(12, do_pv=False), "a32_perm": "    s_mov_b32 s28, 0x07060302\n" + a32(12, perm=True)}
if __name__ == "__main__":
    out = '.amdgcn_target "amdgcn-amd-amdhsa--gfx950"\n'
    for k, b in B.items():
        out += kern(k + "_kernel", b, 5)
        out += kern(k + "_long_kernel", b, 50)
    open("pw.s", "w").write(out)
```

```python
from pw_gen import kern
S = [16, 32]; Q = 48; KV = [80, 96, 112]; O = 128
def body(nsteps, mpos, lpos, kind='reg'):
    L = []; cnt = [0]
    def ld():
        k = cnt[0]; cnt[0] += 1
        so = f"s{40 + (k // 4) % 16}"
        if kind == 'tid': return f"buffer_load_dwordx4 a[{4*(k%40)}:{4*(k%40)+3}], off, s[60:63], {so} offset:{1024*(k%4)} sc1"
        if kind == 'lds': return f"buffer_load_dwordx4 v2, s[16:19], {so} offen offset:{1024*(k%4)} sc1 lds"
        if kind == 'st': return f"buffer_store_dwordx4 v[48:51], v2, s[36:39], {so} offen offset:{1024*(k%4)}"
        return f"buffer_load_dwordx4 a[{4*(k%40)}:{4*(k%40)+3}], v2, s[16:19], {so} offen offset:{1024*(k%4)} sc1"
    for n in range(nsteps):
        def qk(n, c):
            t, i = n//4, n%4; b = S[n%2]
            return f"v_mfma_f32_32x32x16_bf16 v[{b}:{b+15}], v[{KV[t%3]+4*c}:{KV[t%3]+4*c+3}], v[{Q+8*i+4*c}:{Q+8*i+4*c+3}], " + ("0" if c == 0 else f"v[{b}:{b+15}]")
        def pv(n, c):
            t, i = n//4, n%4; b = S[n%2]; o = O + 16*i
            return f"v_mfma_f32_32x32x16_bf16 v[{o}:{o+15}], v[{KV[t%3]+8+4*c}:{KV[t%3]+8+4*c+3}], v[{b+4*c}:{b+4*c+3}], v[{o}:{o+15}]"
        ex = lambda n, k: f"v_exp_f32 v{S[n%2]+k}, v{S[n%2]+k}"
        cv = lambda n, k: f"v_perm_b32 v{S[n%2]+k}, v{S[n%2]+2*k+1}, v{S[n%2]+2*k}, s28"
        va = [ex(n,0), cv(n-1,7), ex(n,1), ex(n,2), cv(n,0), ex(n,3), ex(n,4), cv(n,1), ex(n,5), ex(n,6), cv(n,2), ex(n,7),
              ex(n,8), cv(n,3), ex(n,9), ex(n,10), cv(n,4), ex(n,11), ex(n,12), cv(n,5), ex(n,13), ex(n,14), cv(n,6), ex(n,15)]
        M = [pv(n-1,1), qk(n+1,0), qk(n+1,1), pv(n,0)]
        for k, x in enumerate(va):
            for j, p in enumerate(mpos):
                if p == k:
                    L.append(M[j])
                    for _ in range(lpos[j]): L.append(ld())
            L.append(x)
        if n % 4 == 3: L.append("s_waitcnt vmcnt(14)")
    return "".join("    " + x + "\n" for x in L)
pre = "    s_mov_b32 s28, 0x07060302\n    s_mov_b32 m0, 0\n    v_and_b32 v2, 63, v0\n    v_lshlrev_b32 v2, 4, v2\n    v_lshrrev_b32 v3, 6, v0\n    s_nop 1\n    v_readfirstlane_b32 s30, v3\n    s_nop 3\n    s_lshl_b32 s30, s30, 16\n" + "".join(f"    s_add_u32 s{40+k}, s30, {4096*k}\n" for k in range(16))
pre += "    s_mov_b32 s36, s6\n    s_mov_b32 s37, s7\n    s_mov_b32 s38, 0x800000\n    s_mov_b32 s39, 0x20000\n"
pre += "    s_mov_b32 s60, s6\n    s_or_b32 s61, s7, 0x100000\n    s_mov_b32 s62, 0x100000\n    s_mov_b32 s63, 0x800000\n"
prest = "    s_lshl_b32 s31, s2, 14\n    s_add_u32 s31, s31, 0x300000\n    s_lshr_b32 s30, s30, 4\n    s_add_u32 s31, s31, s30\n" + "".join(f"    s_mov_b32 s{40+k}, s31\n" for k in range(16))
CUR = (4, 8, 12, 20); EV = (4, 10, 16, 22)
B = {"c000": (CUR, (0,0,0,0)), "c1011": (CUR, (1,0,1,1)), "c1011_tid": (CUR, (1,0,1,1), 'tid'), "c1010": (CUR, (1,0,1,0)), "c1010_tid": (CUR, (1,0,1,0), 'tid'), "c1011b": (CUR, (1,0,1,1)), "c1011_tidb": (CUR, (1,0,1,1), 'tid')}
if __name__ == "__main__":
    out = '.amdgcn_target "amdgcn-amd-amdhsa--gfx950"\n'
    for k, a in B.items():
        kk = kern(k + "_kernel", body(20, *a), 4).replace("    s_barrier\n", pre + (prest if '_st' in k else "") + "    s_barrier\n", 1)
        out += kk
    open("pw7.s", "w").write(out)
```
